```python
import torch

def _softmax(x, axis=-1):
    return torch.softmax(x, dim=axis)

def _gelu(x):
    return torch.nn.functional.gelu(x, approximate='tanh')

def _silu(x):
    return torch.nn.functional.silu(x)

def _sigmoid(x):
    return torch.sigmoid(x)

def _layernorm(x, axis=-1, eps=1e-05):
    m = x.mean(dim=axis, keepdim=True)
    v = x.var(dim=axis, keepdim=True, unbiased=False)
    return (x - m) / torch.sqrt(v + eps)

def _scatter_add(tgt, idx, src, axis=0):
    return tgt.clone().index_add_(axis, idx, src)

def _segment_sum(src, seg, n):
    out = torch.zeros((n,) + src.shape[1:], dtype=src.dtype)
    return out.index_add_(0, seg, src)

def _pad(x, pw):
    flat = tuple((v for pair in reversed(pw) for v in pair))
    return torch.nn.functional.pad(x, flat)
kernel_name = 'adaLN_cond__ssm_conv_s4d__glu_gated_glu__prompt'

def setup_inputs():

    _w = lambda a: (lambda t: t.to(torch.bfloat16) if t.is_floating_point() else t)(torch.as_tensor(a))

    def _A_setup():
        Bsz, L, D, N = (1, 2048, 512, 128)
        return {'u': _w((lambda *s: torch.randn(*s, dtype=torch.bfloat16) * 0.05)(Bsz, L, D)), 'log_A_real': _w((lambda *s: torch.randn(*s, dtype=torch.bfloat16) * 3.2)(D, N) * 0.5), 'A_imag': _w((lambda *s: torch.randn(*s, dtype=torch.bfloat16) * 0.1)(D, N) * 3.14), 'C_real': _w((lambda *s: torch.randn(*s, dtype=torch.bfloat16) * 0.4)(D, N) / N ** 0.5), 'C_imag': _w((lambda *s: torch.randn(*s, dtype=torch.bfloat16) * 0.4)(D, N) / N ** 0.5), 'log_dt': _w((lambda *s: torch.randn(*s, dtype=torch.bfloat16) * 0.1)(D) * 0.5 - 4.0), 'D_skip': _w((lambda *s: torch.randn(*s, dtype=torch.bfloat16) * 0.1)(D))}
    _A_in = _A_setup()

    def _B_setup():
        B, S, D, F = (1, 2048, 512, 1792)
        return {'x': _w((lambda *s: torch.randn(*s, dtype=torch.bfloat16) * 0.05)(B, S, D)), 'w_gate': _w((lambda *s: torch.randn(*s, dtype=torch.bfloat16) * 0.05)(D, F)), 'w_up': _w((lambda *s: torch.randn(*s, dtype=torch.bfloat16) * 0.05)(D, F)), 'w_down': _w((lambda *s: torch.randn(*s, dtype=torch.bfloat16) * 0.05)(F, D))}
    _B_in = _B_setup()
    return {'A_u': _A_in['u'], 'A_log_A_real': _A_in['log_A_real'], 'A_A_imag': _A_in['A_imag'], 'A_C_real': _A_in['C_real'], 'A_C_imag': _A_in['C_imag'], 'A_log_dt': _A_in['log_dt'], 'A_D_skip': _A_in['D_skip'], 'B_x': _B_in['x'], 'B_w_gate': _B_in['w_gate'], 'B_w_up': _B_in['w_up'], 'B_w_down': _B_in['w_down'], 'c': _w((lambda *s: torch.randn(*s, dtype=torch.bfloat16) * 0.1)(1, 512) * 8.0), 'w_mod': _w((lambda *s: torch.randn(*s, dtype=torch.bfloat16) * 0.1)(512, 6 * 512) * 512 ** (-0.5) * 8.0)}

def reference(A_u, A_log_A_real, A_A_imag, A_C_real, A_C_imag, A_log_dt, A_D_skip, B_x, B_w_gate, B_w_up, B_w_down, c, w_mod):

    def _A_ref(u, log_A_real, A_imag, C_real, C_imag, log_dt, D_skip):
        L = u.shape[1]
        dt = torch.exp(log_dt)
        A = -torch.exp(log_A_real) + 1j * A_imag
        C = (C_real + 1j * C_imag) * dt[:, None]
        pos = (lambda x, dt: x.to(dt))(torch.arange(L), log_dt.dtype)
        P = torch.exp((A * dt[:, None])[:, :, None] * pos[None, None, :])
        K = 2.0 * torch.einsum('dn,dnl->dl', C, P).real
        L2 = 2 * L
        u_t = (lambda x, *d: x.permute(*d))(u, 0, 2, 1)
        Kf = (lambda x, *a, **k: torch.fft.rfft(x.float(), *a, **k))(K, L2)
        Uf = (lambda x, *a, **k: torch.fft.rfft(x.float(), *a, **k))(u_t, L2)
        y = (lambda x, *a, **k: torch.fft.irfft(x, *a, **k).to(torch.bfloat16))(Uf * Kf[None, :, :], L2)[:, :, :L]
        y = (lambda x, *d: x.permute(*d))(y, 0, 2, 1)
        return y + u * D_skip[None, None, :]

    def _B_ref(x, w_gate, w_up, w_down):
        g = torch.einsum('bsd,df->bsf', x, w_gate)
        u = torch.einsum('bsd,df->bsf', x, w_up)
        h = _sigmoid(g) * u
        return torch.einsum('bsf,fd->bsd', h, w_down)
    x = A_u
    mod = (_silu(c) @ w_mod).reshape(c.shape[0], 6, 1, -1)
    sa, ca, ga, sb, cb, gb = (mod[:, 0].clone(), mod[:, 1].clone(), mod[:, 2].clone(), mod[:, 3].clone(), mod[:, 4].clone(), mod[:, 5].clone())
    h = _layernorm(x, axis=-1) * (1 + ca) + sa
    x = x + ga * _A_ref(h, A_log_A_real, A_A_imag, A_C_real, A_C_imag, A_log_dt, A_D_skip)
    h = _layernorm(x, axis=-1) * (1 + cb) + sb
    x = x + gb * _B_ref(h, B_w_gate, B_w_up, B_w_down)
    return x
```

```python
import re
class Asm:
    def __init__(self):
        self.L=[]
    def __call__(self, s):
        for ln in s.split("\n"):
            ln=ln.strip()
            if ln: self.L.append(ln)
    def label(self, n): self.L.append(n+":")
    def text(self): return "\n".join(("" if l.endswith(":") or l.startswith(".") else "  ")+l for l in self.L)

def vr(b,n=1,k="v"):
    return f"{k}{b}" if n==1 else f"{k}[{b}:{b+n-1}]"
def sr(b,n=1): return vr(b,n,"s")
def ar(b,n=1): return vr(b,n,"a")

class Cnt:
    def __init__(self, A, name, mx):
        self.A=A; self.name=name; self.mx=mx; self.issued=0; self.done=0
    def issue(self, s, n=1):
        self.A(s); self.issued+=n; return self.issued-1
    def wait(self, ticket):
        if ticket is None or ticket<self.done: return
        n=min(self.issued-1-ticket, self.mx)
        self.A(f"s_waitcnt {self.name}({n})")
        self.done=self.issued-n
    def drain(self):
        self.A(f"s_waitcnt {self.name}(0)"); self.done=self.issued
    def mark_drained(self): self.done=self.issued

REG=re.compile(r"^(-|abs\(|\|)?([vsa])(?:(\d+)|\[(\d+):(\d+)\])\)?\|?$")
def regs(tok):
    tok=tok.strip()
    if tok in("vcc",): return {("s",106),("s",107)}
    if tok=="vcc_lo": return {("s",106)}
    if tok=="vcc_hi": return {("s",107)}
    if tok=="exec": return {("s",126),("s",127)}
    if tok=="m0": return {("s",124)}
    m=REG.match(tok)
    if not m: return set()
    k=m.group(2)
    if m.group(3) is not None: return {(k,int(m.group(3)))}
    return {(k,i) for i in range(int(m.group(4)),int(m.group(5))+1)}
TRANS=("v_exp_f32","v_log_f32","v_rcp_f32","v_rsq_f32","v_sqrt_f32","v_sin_f32","v_cos_f32","v_rcp_iflag_f32")
class I:
    def __init__(self, s):
        self.s=s
        s=s.split(";")[0].strip()
        self.label = s[:-1] if s.endswith(":") else None
        self.direc = s.startswith(".") and not self.label
        p=s.split(None,1)
        self.mn=p[0] if p else ""
        mn=self.mn
        rest=p[1] if len(p)>1 else ""
        ops=[]; depth=0; cur=""
        for ch in rest:
            if ch=="[": depth+=1
            if ch=="]": depth-=1
            if ch=="," and depth==0: ops.append(cur.strip()); cur=""
            else: cur+=ch
        if cur.strip(): ops.append(cur.strip())
        self.mods=""
        if ops:
            q=ops[-1].split(None,1)
            ops[-1]=q[0]; self.mods=q[1] if len(q)>1 else ""
        self.ops=ops
        self.mfma=mn.startswith("v_mfma")
        self.valu=mn.startswith("v_") and not self.mfma
        self.vmem=mn.startswith(("buffer_","global_","flat_"))
        self.ds=mn.startswith("ds_")
        self.salu=mn.startswith("s_")
        self.trans=mn.replace("_e32","").replace("_e64","") in TRANS
        self.dot=mn.startswith("v_dot")
        self.dpp=("_dpp" in mn) or ("row_" in self.mods) or ("quad_perm" in self.mods) or("wave_" in self.mods)
        self.perml=mn.startswith("v_permlane")
        self.sdwa=("_sdwa" in mn) or ("dst_sel" in self.mods)
        R=[regs(o) for o in ops]
        self.W=set(); self.Rd=set(); self.A_=self.B_=self.C_=set()
        U=lambda l: set().union(*l) if l else set()
        if self.label or self.direc or not mn: pass
        elif self.mfma:
            self.W=R[0]; self.A_,self.B_,self.C_=R[1],R[2],R[3]; self.Rd=U(R[1:])
            self.passes=8 if "32x32x16" in mn else 4
        elif self.valu:
            if mn.startswith("v_cmpx"):
                self.W=R[0]|regs("exec"); self.Rd=U(R[1:])
            elif self.perml or mn.startswith("v_swap"):
                self.W=R[0]|R[1]; self.Rd=R[0]|R[1]
            elif mn.startswith(("v_add_co","v_sub_co","v_addc_co","v_subb_co","v_subrev_co","v_div_scale","v_mad_u64")):
                self.W=R[0]|R[1]; self.Rd=U(R[2:])
            elif mn=="v_nop": pass
            else:
                self.W=R[0]; self.Rd=U(R[1:])
                if mn.startswith(("v_fmac","v_mac","v_dot2c","v_pk_fmac","v_writelane")) or self.dpp or self.sdwa: self.Rd=self.Rd|R[0]
                if mn.startswith("v_cndmask") and len(ops)==3: self.Rd|=regs("vcc")
        elif self.vmem:
            lds=" lds" in (" "+self.mods) or "_lds_" in mn
            self.lds=lds
            if mn.startswith(("buffer_wbl2","buffer_inv")): pass
            elif "load" in mn and not lds:
                self.W=R[0]; self.Rd=U(R[1:])
            else:
                self.Rd=U(R)
                if "atomic" in mn and "sc0" in self.mods: self.W=R[0]
                if lds: self.Rd|=regs("m0")
            self.wide_store = ("store" in mn) and mn.endswith(("x3","x4"))
            if self.wide_store: self.data = R[0] if mn.startswith("buffer") else R[1]
        elif self.ds:
            if mn.startswith(("ds_read","ds_bpermute","ds_permute","ds_swizzle")) or "_rtn" in mn:
                self.W=R[0]; self.Rd=U(R[1:])
            else: self.Rd=U(R)
        elif self.salu:
            if mn.startswith(("s_cmp","s_cbranch","s_branch","s_waitcnt","s_nop","s_barrier","s_endpgm","s_setprio","s_sleep","s_bitcmp")):
                self.Rd=U(R)
            else:
                self.W=R[0] if R else set(); self.Rd=U(R[1:])
                if "saveexec" in mn: self.W=self.W|regs("exec")
        self.states = 0 if (self.label or self.direc or not mn) else (int(ops[0],0)+1 if mn=="s_nop" else 1)
def isv(S): return {r for r in S if r[0] in "va"}
def iss(S): return {r for r in S if r[0]=="s"}
EXEC=regs("exec")
def need(p,c):
    n=0
    if p.valu:
        pv=isv(p.W); ps=iss(p.W)
        if c.mfma and pv&c.Rd: n=max(n,3 if p.dot else 2)
        if c.mfma and ps&EXEC: n=max(n,4)
        if p.trans and c.valu and not c.trans and pv&c.Rd: n=max(n,1)
        if p.trans and (c.vmem or c.ds) and pv&c.Rd: n=max(n,1)
        if c.valu and c.dpp and pv&c.Rd: n=max(n,2)
        if c.valu and c.dpp and ps&EXEC: n=max(n,5)
        if c.perml and pv&c.Rd: n=max(n,2)
        if c.perml and ps&EXEC: n=max(n,4)
        if c.mn.startswith(("v_readlane","v_readfirstlane")) and pv&c.Rd: n=max(n,1)
        if c.mn.startswith(("v_readlane","v_readfirstlane","v_writelane")) and ps&EXEC: n=max(n,4)
        if c.mn.startswith(("v_readlane","v_writelane")) and ps&iss(c.Rd): n=max(n,4)
        if c.vmem and ps&c.Rd: n=max(n,5)
        if c.valu and ps&c.Rd: n=max(n,2)
        if c.salu and ps&c.Rd: n=max(n,1)
        if c.mn.startswith("s_cbranch_vcc") and ps&regs("vcc"): n=max(n,1)
        if p.sdwa and c.valu and pv&(c.Rd|c.W): n=max(n,1)
        if p.dot and (c.valu or c.vmem or c.ds) and pv&(c.Rd|c.W):
            same = c.mn==p.mn and len(c.ops)>=3 and not (pv&(regs(c.ops[1])|regs(c.ops[2])))
            if not same: n=max(n,3)
    if p.mfma:
        big=p.passes==8
        if c.mfma:
            if p.W&(c.A_|c.B_): n=max(n,12 if big else 8)
            if p.W&c.C_ and not (c.C_==p.W and c.passes==p.passes): n=max(n,10 if big else 6)
            if p.W&c.W and not (c.W==p.W and c.passes==p.passes): n=max(n,10 if big else 6)
        elif (c.valu or c.vmem or c.ds) and p.W&(c.Rd|c.W): n=max(n,12 if big else 8)
        if c.valu and p.C_&c.W: n=max(n,7 if big else 3)
    if p.vmem and getattr(p,"wide_store",False):
        if p.data&c.W: n=max(n,2 if (c.valu or c.mfma) else 1)
    if p.salu and ("s",124) in p.W and (c.vmem and getattr(c,"lds",False)): n=max(n,1)
    return n
def pad_hazards(lines, verbose=False):
    total=0
    while True:
        ins=[I(l) for l in lines]
        lab={x.label:i for i,x in enumerate(ins) if x.label}
        br={}
        for i,x in enumerate(ins):
            if x.mn.startswith(("s_cbranch","s_branch")): br.setdefault(lab[x.ops[0]],[]).append(i)
        def preds(i):
            r=[]
            if i>0 and ins[i-1].mn not in("s_branch","s_endpgm"): r.append(i-1)
            if ins[i].label: r+=br.get(i,[])
            return r
        fix=None
        for i,c in enumerate(ins):
            if c.states==0: continue
            worst=0; seen={}
            stack=[(j,0) for j in preds(i)]
            while stack:
                j,d=stack.pop()
                if seen.get(j,99)<=d: continue
                seen[j]=d
                p=ins[j]
                if p.states:
                    k=need(p,c)-d
                    if k>worst: worst=k; why=p.s
                d2=d+p.states
                if d2<12: stack+=[(q,d2) for q in preds(j)]
            if worst>0:
                fix=(i,worst,why); break
        if not fix: break
        i,w,why=fix
        if verbose: print(f"pad {w} before '{lines[i]}' due to '{why}'")
        lines.insert(i,f"s_nop {w-1}"); total+=w
    return total

def pad_hazards_fast(lines, verbose=False):
    ins=[I(l) for l in lines]
    out=[]; total=0
    for c in ins:
        if c.states:
            d=0; worst=0; why=None
            for p in reversed(out):
                if p.mn in("s_branch","s_endpgm"): break
                if p.states:
                    k=need(p,c)-d
                    if k>worst: worst=k; why=p.s
                    d+=p.states
                    if d>=12: break
            if worst>0:
                if verbose: print(f"pad {worst} before '{c.s}' due to '{why}'")
                out.append(I(f"s_nop {worst-1}")); total+=worst
        out.append(c)
    lines[:]=[x.s for x in out]
    total+=pad_hazards(lines,verbose)
    return total

def kernel_desc(name, vgpr, sgpr=96, accum=None):
    accum = accum if accum is not None else (vgpr+3)//4*4
    return f""".amdhsa_kernel {name}
  .amdhsa_next_free_vgpr {vgpr}
  .amdhsa_next_free_sgpr {sgpr}
  .amdhsa_accum_offset {accum}
  .amdhsa_group_segment_fixed_size 0
  .amdhsa_kernarg_size 128
  .amdhsa_user_sgpr_count 2
  .amdhsa_user_sgpr_kernarg_segment_ptr 1
  .amdhsa_system_sgpr_workgroup_id_x 1
.end_amdhsa_kernel"""
```

```python
from asmlib import *
def kernels(G):
    globals().update({k:v for k,v in G.items() if k not in("kernels","__name__")})
    ks=[gen_k2,gen_k3,gen_k4]
    n=int(next((a[5:] for a in sys.argv if a.startswith("--nk=")),4))
    return ks[:n-1]
def PK(lo):
    b=0 if lo else 1
    return f"op_sel:[0,{b}] op_sel_hi:[1,{b}]"
def gen_k2():
    A=Asm(); T=Stamps(A,1)
    KCS=4160; L_KC=0; L_U=4*KCS; US=1280; L_Y=L_U+8*US; YS=9248; L_CNT=L_Y+4*YS; L_SD=L_CNT+64; SDS=6912; LDS=L_SD+4*SDS
    A("s_cmp_ge_u32 s2, 256\ns_cbranch_scc1 Lk2_end")
    T(0)
    WS=srd(A,"ws",8)
    A(f"s_load_dwordx2 s[12:13], s[0:1], {KA['dskip']}")
    A(f"s_load_dwordx4 s[16:19], s[0:1], {KA['wg']}")
    WD=srd(A,"wd",20)
    A("v_lshrrev_b32 v1, 6, v0\nv_readfirstlane_b32 s3, v1\nv_and_b32 v2, 63, v0")
    A("s_cmp_ge_u32 s3, 4\ns_cbranch_scc1 Lk2_side")
    A("s_and_b32 s4, s2, 7\ns_lshl_b32 s4, s4, 5\ns_lshr_b32 s5, s2, 3\ns_add_u32 s4, s4, s5")
    A(f"s_lshr_b32 s5, s4, 2\ns_mul_i32 s5, s5, {XTROW}\ns_and_b32 s6, s4, 3\ns_lshl_b32 s6, s6, 5\ns_add_u32 s5, s5, s6\ns_add_u32 s5, s5, {WS_XT}")
    A(f"s_mov_b32 s6, {WS_STAT}")
    A(f"s_lshr_b32 s24, s3, 1\ns_and_b32 s25, s3, 1")
    A(f"s_lshl_b32 s7, s4, 1\ns_add_u32 s7, s7, s24\ns_mul_i32 s7, s7, {KXROW}\ns_lshl_b32 s14, s25, 2\ns_sub_u32 s7, s7, s14\ns_add_u32 s7, s7, {WS_KX+128}")
    A(f"s_mul_i32 s14, s3, {KCS}\ns_add_u32 s14, s14, {L_KC+32}\ns_mov_b32 m0, s14")
    A("v_lshlrev_b32 v3, 7, v0\nv_lshlrev_b32 v4, 6, v0\nv_lshlrev_b32 v5, 4, v2")
    A("s_lshl_b32 s15, s4, 3\ns_lshl_b32 s26, s4, 2")
    A("s_waitcnt lgkmcnt(0)")
    A(f"buffer_load_dwordx4 v[8:11], v3, {WS}, s5 offen\nbuffer_load_dwordx4 v[12:15], v3, {WS}, s5 offen offset:16")
    for i in range(4): A(f"buffer_load_dwordx4 {vr(16+4*i,4)}, v4, {WS}, s6 offen offset:{16*i}")
    A("s_add_u32 s28, s8, s15\ns_addc_u32 s29, s9, 0\ns_add_u32 s12, s12, s26\ns_addc_u32 s13, s13, 0")
    for vec in range(3):
        for part in range(4): A(f"s_load_dwordx2 {sr(32+8*vec+2*part,2)}, s[28:29], {WS_MODP+part*12288+vec*2048}")
    A("s_load_dword s56, s[12:13], 0")
    for i in range(4): A(f"buffer_load_dwordx4 v5, {WS}, s7 offen offset:{1024*i} lds")
    T(1)
    A("v_mov_b32 v32, 0")
    A(f"v_lshrrev_b32 v6, 5, v0\nv_mul_u32_u24 v6, {US}, v6\nv_and_b32 v7, 31, v0\nv_lshl_add_u32 v6, v7, 2, v6\nds_write_b32 v6, v32 offset:{L_U}")
    A(f"v_and_b32 v7, 7, v0\nv_lshlrev_b32 v7, 2, v7\ns_sub_u32 s14, s14, 32\nv_add_u32 v6, s14, v7\nds_write_b32 v6, v32")
    A(f"s_mul_i32 s14, s3, {YS}\nv_add_u32 v6, s14, v7\nds_write_b32 v6, v32 offset:{L_Y}\nds_write_b32 v7, v32 offset:{L_CNT}")
    A("v_and_b32 v33, 15, v0\nv_bfe_u32 v34, v0, 4, 2\nv_and_b32 v35, 3, v0\nv_bfe_u32 v36, v0, 2, 2")
    A(f"v_lshlrev_b32 v37, 3, v34\nv_add_u32 v37, v37, v36\nv_sub_u32 v37, v35, v37\nv_add_u32 v37, 28, v37")
    A(f"s_mul_i32 s15, s24, {2*KCS}\nv_lshl_add_u32 v224, v37, 3, s15")
    A(f"v_lshl_add_u32 v37, v34, 1, v33\ns_lshl_b32 s15, s24, 2\ns_add_u32 s15, s15, s25\ns_mul_i32 s15, s15, {US}\ns_add_u32 s15, s15, {L_U+8}\nv_lshl_add_u32 v225, v37, 3, s15")
    A(f"v_lshrrev_b32 v37, 1, v33\nv_add_u32 v37, v37, v34\nv_lshlrev_b32 v37, 4, v37\nv_lshl_add_u32 v37, v33, 6, v37\ns_add_u32 s14, s14, {L_Y+32}\nv_add_u32 v226, s14, v37")
    A(f"v_lshrrev_b32 v37, 2, v0\nv_lshlrev_b32 v37, 4, v37\nv_lshl_add_u32 v227, v0, 5, v37\nv_add_u32 v227, {L_Y+32}, v227")
    A("v_cmp_eq_u32 vcc, 0, v35\nv_mov_b32 v37, 4\nv_mov_b32 v38, 20\nv_cndmask_b32 v37, v37, v38, vcc\nv_sub_u32 v228, v227, v37")
    A(f"v_lshlrev_b32 v229, 2, v0\nv_add_u32 v229, {L_U+128}, v229")
    A(f"v_lshrrev_b32 v37, 4, v0\nv_lshlrev_b32 v37, 17, v37\nv_lshl_add_u32 v230, v33, 4, v37\ns_lshl_b32 s27, s4, 9\ns_add_u32 s27, s27, {WS_X2}")
    A("s_waitcnt lgkmcnt(0)")
    for part in range(4):
        for vec in range(3):
            d=vr(232+2*vec,2); A(f"v_pk_add_f32 {d}, {sr(32+8*vec+2*part,2)}, {d if part else 0}"+("" if part else " op_sel_hi:[1,0]"))
    for vec in range(3): A(f"v_cvt_pk_bf16_f32 v{232+2*vec}, v{232+2*vec}, v{233+2*vec}")
    for vec in range(3): A(f"v_and_b32 v{233+2*vec}, 0xffff0000, v{232+2*vec}\nv_lshlrev_b32 v{232+2*vec}, 16, v{232+2*vec}")
    A("v_add_f32 v234, 1.0, v234\nv_add_f32 v235, 1.0, v235\ns_lshl_b32 s57, s56, 16\ns_and_b32 s56, s56, 0xffff0000")
    A("v_cvt_pk_bf16_f32 v234, v234, v235\nv_mul_f32 v238, s57, v236\nv_mul_f32 v239, s56, v237\nv_and_b32 v235, 0xffff0000, v234\nv_lshlrev_b32 v234, 16, v234")
    A("s_waitcnt vmcnt(8)")
    T(2)
    for e in range(8): A(f"v_lshlrev_b32 v{32+2*e}, 16, v{8+e}\nv_and_b32 v{33+2*e}, 0xffff0000, v{8+e}")
    A("s_waitcnt vmcnt(4)")
    for e in range(8): A(f"v_pk_fma_f32 {vr(48+2*e,2)}, {vr(32+2*e,2)}, {vr(16+2*(e&3),2)}, {vr(24+2*(e&3),2)}")
    for e in range(8):
        b=e>>2; A(f"v_pk_fma_f32 {vr(48+2*e,2)}, {vr(48+2*e,2)}, v[234:235], v[232:233] op_sel:[0,{b},{b}] op_sel_hi:[1,{b},{b}]")
    for ch in range(2):
        for rho in range(4): A(f"v_cvt_pk_bf16_f32 v{8+4*ch+rho}, v{48+8*ch+rho}, v{52+8*ch+rho}")
    for q in range(4): A(f"ds_write2st64_b32 v229, v{8+2*q}, v{9+2*q} offset0:{5*2*q} offset1:{5*(2*q+1)}")
    for e in range(8):
        b=e>>2; A(f"v_pk_fma_f32 {vr(32+2*e,2)}, {vr(48+2*e,2)}, v[238:239], {vr(32+2*e,2)} op_sel:[0,{b},0] op_sel_hi:[1,{b},1]")
    A("s_waitcnt vmcnt(0) lgkmcnt(0)\ns_barrier")
    T(3)
    lg=Cnt(A,"lgkmcnt",15)
    ACC=192
    def reads(g):
        rp,par=g>>1,g&1; base=64+64*(g&1); L=[]
        for i in range(8):
            b=2*i+par; j=2*i-par
            for hf in range(2): L.append((("A",i),f"ds_read_b64_tr_b16 {vr(base+8*i+2*hf,2)}, v224 offset:{rp*KCS+256*b+32*(1-hf)}"))
            for hf in range(2): L.append((("B",i),f"ds_read_b64 {vr(base+8*i+4+2*hf,2)}, v225 offset:{rp*2*US+64*(j+1)+8*hf}"))
        return L
    tk={}
    q=[(0,)+x for x in reads(0)]
    def pop(n):
        for _ in range(n):
            if q:
                g,key,txt=q.pop(0); tk[(g,)+key]=lg.issue(txt)
    pop(12)
    for g in range(4):
        base=64+64*(g&1)
        if g<3: q+=[(g+1,)+x for x in reads(g+1)]
        if g>0: lg.drain()
        yw=[]
        for t in range(8):
            for k in range(t+1):
                beta,tau=(k,t-k)
                if g==0:
                    while (0,"B",t) not in tk or (q and q[0][0]==0 and q[0][1]==("B",t)): pop(1)
                    if k==0: lg.wait(tk[(0,"B",t)])
                c = "0" if (g==0 and k==0) else vr(ACC+4*t,4)
                A(f"v_mfma_f32_16x16x32_bf16 {vr(ACC+4*t,4)}, {vr(base+8*beta,4)}, {vr(base+8*tau+4,4)}, {c}")
                pop(2 if g==0 else 1)
                if g==3:
                    yw=[(tt,d+1) for tt,d in yw]
                    if yw and yw[0][1]>=7:
                        tt=yw.pop(0)[0]; lg.issue(f"ds_write_b128 v226, {vr(ACC+4*tt,4)} offset:{1152*tt}")
            if g==3: yw.append((t,0))
        assert not q
    for tt,_ in yw: lg.issue(f"ds_write_b128 v226, {vr(ACC+4*tt,4)} offset:{1152*tt}")
    T(4)
    A(f"v_mov_b32 v6, {L_CNT}\nv_mov_b32 v7, 1\ns_mov_b64 exec, 1\ns_waitcnt lgkmcnt(0)\nds_add_u32 v6, v7\ns_mov_b64 exec, -1\ns_mov_b32 s14, 0")
    A.label("Lk2_spin")
    A("ds_read_b32 v7, v6\ns_add_u32 s14, s14, 1\ns_cmp_gt_u32 s14, 0x100000\ns_cbranch_scc1 Lk2_go\ns_waitcnt lgkmcnt(0)\nv_cmp_gt_u32 vcc, 4, v7\ns_cbranch_vccnz Lk2_spin")
    A.label("Lk2_go")
    T(5)
    for ch in range(2):
        o=2*ch*YS; b=64+20*ch
        A(f"ds_read_b128 {vr(b,4)}, v227 offset:{o}\nds_read_b128 {vr(b+4,4)}, v227 offset:{o+16}")
        A(f"ds_read_b32 v{b+11}, v228 offset:{o+YS}\nds_read_b128 {vr(b+12,4)}, v227 offset:{o+YS}\nds_read_b128 {vr(b+16,4)}, v227 offset:{o+YS+16}")
    for ch in range(2):
        b=64+20*ch
        A(f"s_waitcnt lgkmcnt({8-5*ch})")
        for e in range(4): A(f"v_pk_fma_f32 {vr(32+8*ch+2*e,2)}, {vr(b+2*e,2)}, v[236:237], {vr(32+8*ch+2*e,2)} op_sel:[0,{ch},0] op_sel_hi:[1,{ch},1]")
        A(f"s_waitcnt lgkmcnt({5-5*ch})")
        for e in range(8): A(f"v_fmac_f32 v{32+8*ch+e}, v{236+ch}, v{b+11+e}")
        for e in range(4): A(f"v_cvt_pk_bf16_f32 v{8+4*ch+e}, v{32+8*ch+2*e}, v{33+8*ch+2*e}")
        A(f"buffer_store_dwordx4 {vr(8+4*ch,4)}, v230, {WS}, s27 offen offset:{256*ch} sc1")
    if STAMP:
        T(6); A("s_waitcnt vmcnt(0)"); T(7)
        A("s_cmp_lg_u32 s3, 0\ns_cbranch_scc1 Lk2_end"); T.flush(WS,0,8,2)
    A("s_endpgm")
    A.label("Lk2_side")
    A("s_sub_u32 s3, s3, 4")
    A("s_and_b32 s4, s2, 3\ns_lshr_b32 s5, s2, 2\ns_cmp_ge_u32 s5, 28\ns_cselect_b32 s6, 1, 0\ns_cselect_b32 s7, 28, 0\ns_sub_u32 s5, s5, s7")
    A(f"s_mul_i32 s24, s3, {SDS}\ns_add_u32 s24, s24, {L_SD}")
    A("s_mul_i32 s25, s4, 458752\ns_lshl_b32 s26, s5, 7\ns_add_u32 s25, s25, s26\ns_lshl_b32 s26, s3, 5\ns_add_u32 s25, s25, s26")
    A("v_lshrrev_b32 v3, 1, v2\nv_mul_u32_u24 v3, 3584, v3\nv_and_b32 v4, 1, v2\nv_lshl_add_u32 v3, v4, 4, v3")
    A("v_lshrrev_b32 v4, 3, v2\nv_lshlrev_b32 v4, 10, v4\nv_and_b32 v5, 7, v2\nv_lshl_add_u32 v4, v5, 4, v4")
    A("s_lshr_b32 s27, s2, 1\ns_and_b32 s28, s2, 1\ns_lshl_b32 s28, s28, 2\ns_add_u32 s28, s28, s3")
    A("s_lshl_b32 s29, s27, 14\ns_lshl_b32 s30, s28, 7\ns_add_u32 s29, s29, s30\ns_add_u32 s30, s29, 8192")
    A(f"v_lshlrev_b32 v5, 3, v2\ns_lshl_b32 s31, s4, 9\ns_add_u32 s31, s31, {WS_MODP+3*2048}")
    A(f"v_lshlrev_b32 v6, 4, v2\ns_lshl_b32 s32, s2, 10\ns_add_u32 s32, s32, {WS_PST}")
    A("v_mov_b32 v8, -1\nv_mov_b32 v9, -1\nv_mov_b32 v10, -1\nv_mov_b32 v11, -1")
    A("s_mov_b32 m0, s24")
    A("s_waitcnt lgkmcnt(0)")
    A("s_cmp_lg_u32 s3, 0\ns_cbranch_scc1 Lk2_s1")
    A(f"buffer_store_dwordx4 v[8:11], v6, {WS}, s32 offen sc1")
    A.label("Lk2_s1")
    A("s_cmp_ge_u32 s2, 224\ns_cbranch_scc1 Lk2_end")
    A(f"s_cmp_eq_u32 s6, 1\ns_cselect_b32 s12, s18, s16\ns_cselect_b32 s13, s19, s17\ns_mov_b32 s14, {SZ['wg']}\ns_mov_b32 s15, 0x20000")
    for part in range(4):
        A(f"buffer_load_dwordx2 {vr(16+2*part,2)}, v5, {WS}, s31 offen\nbuffer_load_dwordx2 {vr(24+2*part,2)}, v5, {WS}, s31 offen offset:2048\ns_add_u32 s31, s31, 12288")
    for i in range(4):
        A(f"buffer_load_dwordx4 v3, s[12:15], s25 offen lds\ns_add_u32 s25, s25, 114688\ns_add_u32 m0, m0, 1024")
    A(f"buffer_load_dwordx4 v4, {WD}, s29 offen lds\ns_add_u32 m0, m0, 1024\ns_nop 0\nbuffer_load_dwordx4 v4, {WD}, s30 offen lds")
    T(1)
    A("v_and_b32 v33, 15, v2\nv_lshrrev_b32 v34, 4, v2\nv_bfe_u32 v36, v2, 2, 2\nv_and_b32 v37, 1, v2\nv_bfe_u32 v38, v2, 1, 1")
    A("v_lshlrev_b32 v37, 4, v37\nv_lshl_add_u32 v37, v38, 3, v37")
    A("v_lshl_add_u32 v38, v34, 3, v36\nv_lshl_add_u32 v40, v38, 5, v37\nv_add_u32 v40, s24, v40")
    A("v_lshrrev_b32 v38, 5, v2\nv_lshl_add_u32 v38, v38, 3, v36\nv_lshl_add_u32 v41, v38, 7, v37\nv_and_b32 v38, 1, v34\nv_lshl_add_u32 v41, v38, 5, v41\nv_add_u32 v41, s24, v41")
    A("v_add_u32 v42, s24, v5\nv_lshl_add_u32 v43, v2, 2, s24")
    A("v_lshl_add_u32 v44, v34, 5, s24\nv_lshl_add_u32 v45, v34, 4, s24")
    A("v_lshlrev_b32 v46, 9, v38\nv_lshl_add_u32 v46, v33, 4, v46\nv_lshrrev_b32 v38, 5, v2\nv_mul_u32_u24 v38, 7168, v38\nv_add_u32 v46, v46, v38")
    A("s_lshl_b32 s33, s5, 2\ns_add_u32 s33, s33, s3\ns_mul_i32 s34, s33, 9363\ns_lshr_b32 s34, s34, 16\ns_mul_i32 s35, s34, 7\ns_sub_u32 s35, s33, s35")
    A(f"s_lshl_b32 s34, s34, 2\ns_add_u32 s34, s34, s4\ns_mul_i32 s34, s34, 57344\ns_lshl_b32 s35, s35, 10\ns_add_u32 s34, s34, s35\ns_lshl_b32 s35, s6, 8\ns_add_u32 s34, s34, s35\ns_add_u32 s34, s34, {WS_WP}")
    A(f"s_lshl_b32 s33, s33, 10\ns_lshl_b32 s35, s4, 8\ns_add_u32 s33, s33, s35\ns_lshl_b32 s35, s6, 7\ns_add_u32 s33, s33, s35\ns_add_u32 s33, s33, {WS_EX}")
    A(f"s_mul_i32 s36, s28, 224\ns_add_u32 s36, s36, s27\ns_lshl_b32 s36, s36, 10\ns_add_u32 s36, s36, {WS_WD}\ns_add_u32 s37, s36, 114688")
    for i in range(4): A(f"v_mov_b32 v{12+i}, 0x3f803f80")
    A("s_barrier")
    A("s_waitcnt vmcnt(6)")
    for b in (16,24): A(f"v_pk_add_f32 {vr(b,2)}, {vr(b,2)}, {vr(b+2,2)}\nv_pk_add_f32 {vr(b+4,2)}, {vr(b+4,2)}, {vr(b+6,2)}")
    for b in (16,24): A(f"v_pk_add_f32 {vr(b,2)}, {vr(b,2)}, {vr(b+4,2)}")
    A("v_cvt_pk_bf16_f32 v16, v16, v17\nv_cvt_pk_bf16_f32 v24, v24, v25\nds_write_b32 v43, v16 offset:6656")
    A("v_and_b32 v25, 0xffff0000, v24\nv_lshlrev_b32 v24, 16, v24\nv_add_f32 v25, 1.0, v25\nv_add_f32 v24, 1.0, v24\nv_cvt_pk_bf16_f32 v24, v24, v25\nv_and_b32 v25, 0xffff0000, v24\nv_lshlrev_b32 v24, 16, v24")
    A("ds_write_b64 v42, v[24:25] offset:6144\ns_waitcnt lgkmcnt(0)")
    for i in range(4): A(f"ds_read_b128 {vr(64+8*i,4)}, v44 offset:{6144+128*i}\nds_read_b128 {vr(68+8*i,4)}, v44 offset:{6144+128*i+16}\nds_read_b128 {vr(96+4*i,4)}, v45 offset:{6656+64*i}")
    A("s_waitcnt vmcnt(2)")
    T(2)
    for i in range(4):
        for hf in range(2): A(f"ds_read_b64_tr_b16 {vr(48+4*i+2*hf,2)}, v40 offset:{1024*i+128*hf}")
    for i in range(4):
        A(f"s_waitcnt lgkmcnt({6-2*i})")
        A(f"v_mfma_f32_16x16x32_bf16 v[20:23], {vr(96+4*i,4)}, {vr(48+4*i,4)}, {'v[20:23]' if i else 0}")
        for e in range(4):
            A(f"v_lshlrev_b32 v{28+2*(e&1)}, 16, v{48+4*i+e}\nv_and_b32 v{29+2*(e&1)}, 0xffff0000, v{48+4*i+e}")
            A(f"v_mul_f32 v{28+2*(e&1)}, v{28+2*(e&1)}, v{64+8*i+2*e}\nv_mul_f32 v{29+2*(e&1)}, v{29+2*(e&1)}, v{65+8*i+2*e}")
            A(f"v_cvt_pk_bf16_f32 v{112+4*i+e}, v{28+2*(e&1)}, v{29+2*(e&1)}")
        A(f"buffer_store_dwordx4 {vr(112+4*i,4)}, v46, {WS}, s34 offen sc1\ns_add_u32 s34, s34, 14336")
        A(f"v_mfma_f32_16x16x32_bf16 v[16:19], v[12:15], {vr(112+4*i,4)}, {'v[16:19]' if i else 0}")
    A("s_waitcnt vmcnt(4)")
    for j in range(2):
        for hf in range(2): A(f"ds_read_b64_tr_b16 {vr(48+4*j+2*hf,2)}, v41 offset:{4096+64*j+512*hf}")
    A("v_lshlrev_b32 v47, 3, v33")
    A("v_cvt_pk_bf16_f32 v24, v16, v20\nv_lshlrev_b32 v25, 16, v24\nv_and_b32 v26, 0xffff0000, v24\nv_sub_f32 v27, v16, v25\nv_sub_f32 v28, v20, v26")
    A("v_cvt_pk_bf16_f32 v24, v25, v27\nv_cvt_pk_bf16_f32 v25, v26, v28")
    A(f"s_waitcnt lgkmcnt(2)\nbuffer_store_dwordx4 v[48:51], v6, {WS}, s36 offen sc1\ns_waitcnt lgkmcnt(0)\nbuffer_store_dwordx4 v[52:55], v6, {WS}, s37 offen sc1")
    A(f"s_mov_b64 exec, 0xffff\nbuffer_store_dwordx2 v[24:25], v47, {WS}, s33 offen sc1")
    if STAMP:
        T(3); A("s_waitcnt vmcnt(0)"); T(4)
        A("s_cmp_lg_u32 s3, 0\ns_cbranch_scc1 Lk2_end"); T.flush(WS,1,5,2)
    A.label("Lk2_end")
    A("s_endpgm")
    return A, dict(name="conv_kernel", grid=256, block=512, lds=LDS, vgpr=240, accum=None)

def gen_k3():
    A=Asm(); T=Stamps(A,2)
    SLOT=45056; XO=28672; L_EX=3*SLOT; L_ST=L_EX+7168; LDS=L_ST+2048
    A("s_cmp_ge_u32 s2, 256\ns_cbranch_scc1 Lk3_end")
    T(0)
    WS=srd(A,"ws",8)
    A("v_lshrrev_b32 v1, 6, v0\nv_readfirstlane_b32 s3, v1\nv_and_b32 v2, 63, v0")
    A("s_lshr_b32 s6, s2, 3\ns_and_b32 s4, s2, 1\ns_lshl_b32 s4, s4, 3\ns_and_b32 s7, s6, 7\ns_add_u32 s4, s4, s7")
    A("s_bfe_u32 s5, s2, 0x20001\ns_lshl_b32 s5, s5, 2\ns_lshr_b32 s7, s6, 3\ns_add_u32 s5, s5, s7")
    A("s_and_b32 s6, s5, 1\ns_lshl_b32 s6, s6, 1\ns_xor_b32 s6, s6, s3")
    A(f"s_mul_i32 s12, s5, {32*7168}\ns_mul_i32 s7, s6, 7168\ns_add_u32 s12, s12, s7\ns_add_u32 s12, s12, {WS_WP}")
    A(f"s_lshl_b32 s13, s4, 17\ns_lshl_b32 s7, s6, 12\ns_add_u32 s13, s13, s7\ns_add_u32 s13, s13, {WS_X2}")
    A("s_lshr_b32 s14, s5, 1")
    A(f"s_mul_i32 s15, s3, 7168\ns_lshl_b32 s16, s3, 12\ns_add_u32 s16, s16, {XO}")
    A("v_lshlrev_b32 v3, 4, v2")
    A("v_bfe_u32 v5, v2, 2, 2\nv_lshrrev_b32 v6, 4, v2\nv_and_b32 v7, 3, v2\nv_lshlrev_b32 v4, 8, v5\nv_lshl_add_u32 v4, v6, 6, v4\nv_lshl_add_u32 v4, v7, 4, v4")
    vm=Cnt(A,"vmcnt",63); lg=Cnt(A,"lgkmcnt",15)
    def dma_items(st):
        so=(st%3)*SLOT; L=[]
        L.append(("s",f"s_mul_i32 s17, s14, 28672\ns_add_u32 s17, s17, s12\ns_lshl_b32 s18, s14, 14\ns_add_u32 s18, s18, s13\ns_add_u32 m0, s16, {so}\ns_add_u32 s14, s14, 1"))
        for i in range(4): L.append(("v",f"buffer_load_dwordx4 v4, {WS}, s18 offen offset:{1024*i} lds"))
        L.append(("s",f"s_add_u32 m0, s15, {so}\ns_and_b32 s14, s14, 7"))
        for i in range(4): L.append(("v",f"buffer_load_dwordx4 v3, {WS}, s17 offen offset:{1024*i} lds"))
        L.append(("s",f"s_add_u32 m0, s15, {so+4096}\ns_add_u32 s17, s17, 4096"))
        for i in range(3): L.append(("v",f"buffer_load_dwordx4 v3, {WS}, s17 offen offset:{1024*i} lds"))
        return L
    stk={}
    def emit_dma(q,n):
        while q and n>0:
            st,k,txt=q.pop(0)
            if k=="s": A(txt)
            else: stk[st]=vm.issue(txt); n-=1
    A("s_waitcnt lgkmcnt(0)")
    q=[(0,)+x for x in dma_items(0)]+[(1,)+x for x in dma_items(1)]
    emit_dma(q,99)
    A(f"s_mul_i32 s19, s5, 7168\ns_add_u32 s19, s19, {WS_EX}\ns_lshl_b32 s7, s3, 10\ns_add_u32 s20, s19, s7\ns_add_u32 m0, s7, {L_EX}\ns_add_u32 s7, s3, 4\ns_min_u32 s7, s7, 6\ns_lshl_b32 s7, s7, 10")
    vm.issue(f"buffer_load_dwordx4 v3, {WS}, s20 offen lds")
    A(f"s_add_u32 s20, s19, s7\ns_add_u32 m0, s7, {L_EX}\ns_nop 0")
    vm.issue(f"buffer_load_dwordx4 v3, {WS}, s20 offen lds")
    q=[(2,)+x for x in dma_items(2)]
    emit_dma(q,99)
    T(1)
    A("s_and_b32 s21, s3, 1\ns_mul_i32 s7, s21, 3072\nv_add_u32 v8, s7, v3\nv_add_u32 v9, 6144, v3")
    A("v_lshrrev_b32 v10, 5, v2\nv_lshlrev_b32 v10, 11, v10\nv_lshl_add_u32 v10, v5, 6, v10\nv_and_b32 v6, 1, v6\nv_lshl_add_u32 v10, v6, 5, v10\nv_lshl_add_u32 v10, v7, 3, v10")
    A(f"s_xor_b32 s22, s3, 1\ns_lshl_b32 s7, s22, 8\ns_add_u32 s7, s7, {XO}\nv_add_u32 v11, s7, v10\ns_lshl_b32 s7, s3, 8\ns_add_u32 s7, s7, {XO}\nv_add_u32 v10, s7, v10")
    for sl in (1,2):
        for i in range(4): A(f"v_add_u32 v{8+4*sl+i}, {sl*SLOT}, v{8+i}")
    A("v_and_b32 v20, 31, v2\nv_lshrrev_b32 v21, 5, v2\nv_lshlrev_b32 v22, 3, v20\nv_lshl_add_u32 v23, v21, 2, v22")
    A(f"s_lshl_b32 s23, s4, 2\ns_add_u32 s23, s23, s3\ns_lshl_b32 s24, s23, 12\ns_add_u32 s24, s24, {WS_PST}\ns_lshl_b32 s25, s5, 8\ns_add_u32 s25, s25, s24")
    A(f"v_lshl_add_u32 v24, v21, 9, v22\nv_add_u32 v25, {L_EX+6144}, v24\ns_mul_i32 s7, s21, 3072\ns_add_u32 s7, s7, {L_EX}\nv_add_u32 v24, s7, v24")
    A(f"v_and_b32 v26, 15, v2\nv_lshl_add_u32 v26, v26, 1, v21\ns_lshl_b32 s7, s3, 9\ns_add_u32 s7, s7, {L_ST}\nv_lshl_add_u32 v26, v26, 4, s7")
    A(f"v_lshl_add_u32 v27, v20, 4, s7\ns_lshl_b32 s7, s22, 9\ns_add_u32 s7, s7, {L_ST}\nv_lshl_add_u32 v28, v20, 4, s7")
    A(f"s_mul_i32 s26, s5, 7168\ns_add_u32 s26, s26, {WS_H}\ns_mul_i32 s27, s23, 114688\ns_add_u32 s27, s27, s26\ns_xor_b32 s7, s23, 1\ns_mul_i32 s28, s7, 114688\ns_add_u32 s28, s28, s26")
    A("s_add_u32 s29, s27, 6144\ns_mul_i32 s7, s21, 3072\ns_add_u32 s27, s27, s7\ns_add_u32 s28, s28, s7")
    A(f"s_mov_b32 s36, {LOG2E}\ns_mov_b32 s37, 0x3f803f80\ns_mov_b32 s38, 0x3b000000\ns_mov_b32 s39, 0x3727c5ac")
    FR=32; ACC=80; GA=192
    def fr(ks,i): return FR+24*(ks&1)+4*i
    def reads(ks):
        st,k=divmod(ks,4); b=8+4*(st%3); L=[]
        for hf in range(2): L.append(f"ds_read_b64_tr_b16 {vr(fr(ks,0)+2*hf,2)}, v{b+2} offset:{4096*k+1024*hf}")
        L.append(f"ds_read_b128 {vr(fr(ks,2),4)}, v{b} offset:{7168*k}")
        for hf in range(2): L.append(f"ds_read_b64_tr_b16 {vr(fr(ks,1)+2*hf,2)}, v{b+3} offset:{4096*k+1024*hf}")
        L.append(f"ds_read_b128 {vr(fr(ks,3),4)}, v{b} offset:{7168*k+1024}")
        L.append(f"ds_read_b128 {vr(fr(ks,4),4)}, v{b} offset:{7168*k+2048}")
        L.append(f"ds_read_b128 {vr(fr(ks,5),4)}, v{b+1} offset:{7168*k}")
        return L
    def exreads():
        L=[f"ds_read_b128 {vr(GA,4)}, v27", f"ds_read_b128 {vr(GA+4,4)}, v28"]
        for t in range(3): L.append(f"ds_read2_b64 {vr(fr(32,2+t),4)}, v24 offset0:{(128*t)%256} offset1:{(128*t)%256+32}".replace("v24","v29" if t==2 else "v24"))
        L.append(f"ds_read2_b64 {vr(fr(32,5),4)}, v25 offset0:0 offset1:32")
        return L
    A("v_add_u32 v29, 2048, v24")
    MM=[(0,2,0),(3,2,1),(1,3,0),(4,3,1),(2,4,0),(5,4,1),(6,5,0)]
    vm.wait(stk[0]); A("s_barrier")
    T(2)
    for r in reads(0): lg.issue(r)
    dq=[]; fill=[]; gt=None
    for ks in range(33):
        st,k=divmod(ks,4)
        lg.drain()
        if ks==32:
            for x,g in ((0,GA),(1,GA+4)):
                for e in range(4): A(f"v_mov_b32 v{fr(32,x)+e}, v{g+(e&1)}")
        if ks<2:
            for e in range(4):
                c0="0" if (ks==0 and e==0) else None
                A(f"v_dot2_f32_bf16 v30, v{fr(ks,0)+e}, s37, {c0 or 'v30'}\nv_dot2_f32_bf16 v31, v{fr(ks,0)+e}, v{fr(ks,0)+e}, {c0 or 'v31'}")
        rq = reads(ks+1) if ks<31 else (exreads() if ks==31 else [])
        if ks==1: fill=["v_permlane32_swap_b32 v30, v31","v_add_f32 v30, v30, v31",("vm",f"buffer_store_dword v30, v23, {WS}, s25 offen sc1")]
        if ks==18: fill=[("g",f"buffer_load_dwordx4 {vr(GA+4*i,4)}, v3, {WS}, s24 offen offset:{1024*i} sc1") for i in range(4)]
        if ks==24:
            vm.wait(gt)
            A("s_mov_b32 s30, 0")
            A.label("Lk3_chk")
            A(f"v_max3_u32 v208, v{GA}, v{GA+1}, v{GA+2}")
            for i in range(3,15,2): A(f"v_max3_u32 v208, v208, v{GA+i}, v{GA+i+1}")
            A(f"v_max_u32 v208, v208, v{GA+15}\nv_cmp_eq_u32 vcc, -1, v208\ns_cbranch_vccnz Lk3_retry")
            A.label("Lk3_ok")
            fill=[]
            for e in range(4): fill+= [f"v_add_f32 v{GA+e}, v{GA+e}, v{GA+4+e}", f"v_add_f32 v{GA+8+e}, v{GA+8+e}, v{GA+12+e}"]
            for e in range(4): fill.append(f"v_add_f32 v{GA+e}, v{GA+e}, v{GA+8+e}")
            g=GA
            fill+=[f"v_permlane32_swap_b32 v{g}, v{g+2}",f"v_permlane32_swap_b32 v{g+1}, v{g+3}",f"v_add_f32 v{g}, v{g}, v{g+2}",f"v_add_f32 v{g+1}, v{g+1}, v{g+3}",
                   f"v_mov_b32 v{g+2}, v{g}",f"v_mov_b32 v{g+3}, v{g+1}","s_nop 0",f"v_permlane16_swap_b32 v{g}, v{g+2}",f"v_permlane16_swap_b32 v{g+1}, v{g+3}",
                   f"v_add_f32 v{g}, v{g}, v{g+2}",f"v_add_f32 v{g+1}, v{g+1}, v{g+3}",f"v_mul_f32 v{g}, s38, v{g}",f"v_mul_f32 v{g+1}, s38, v{g+1}",
                   f"v_fma_f32 v{g+1}, -v{g}, v{g}, v{g+1}",f"v_cvt_pk_bf16_f32 v{g+4}, -v{g}, -v{g}",f"v_max_f32 v{g+1}, 0, v{g+1}",
                   f"v_cvt_pk_bf16_f32 v{g+1}, v{g+1}, v{g+1}",f"v_lshlrev_b32 v{g+1}, 16, v{g+1}",f"v_add_f32 v{g+1}, s39, v{g+1}",
                   f"v_cvt_pk_bf16_f32 v{g+1}, v{g+1}, v{g+1}",f"v_lshlrev_b32 v{g+1}, 16, v{g+1}",f"v_sqrt_f32 v{g+1}, v{g+1}","s_nop 0",
                   f"v_cvt_pk_bf16_f32 v{g+5}, v{g+1}, v{g+1}",f"v_lshlrev_b32 v{g+7}, 16, v{g+5}",f"v_rcp_f32 v{g+6}, v{g+7}","s_nop 0",
                   f"v_mul_f32_e64 v{g+6}, -v{g+6}, s36",("lg",f"ds_write_b128 v26, {vr(g+4,4)}")]
        for m,(a,w,x) in enumerate(MM):
            c="0" if ks==0 else vr(ACC+16*a,16)
            A(f"v_mfma_f32_32x32x16_bf16 {vr(ACC+16*a,16)}, {vr(fr(ks,w),4)}, {vr(fr(ks,x),4)}, {c}")
            if m==0 and k==3 and st<8:
                assert not dq
                if st<7: vm.wait(stk[st+1])
                if st==7: assert not fill
                A("s_barrier")
                if st+3<8: dq=[(st+3,)+x for x in dma_items(st+3)]
            if rq:
                for _ in range(2):
                    if rq: lg.issue(rq.pop(0))
            elif dq and not (fill and m==6): emit_dma(dq,1 if not (k==2 and m==5) else 9)
            else:
                n=4
                while fill and n>0:
                    f=fill.pop(0)
                    if isinstance(f,tuple):
                        n-=3
                        if f[0]=="lg": lg.issue(f[1])
                        else:
                            t=vm.issue(f[1])
                            if f[0]=="g": gt=t
                    else: A(f); n-=1
    T(3)
    for n,(a,w,x) in enumerate(MM):
        b=ACC+16*a; g=GA+4*x; o=32+4*(n&3)
        for e in range(4): A(f"v_pk_mul_f32 {vr(b+2*e,2)}, {vr(b+2*e,2)}, {vr(g+2,2)} op_sel_hi:[1,0]")
        for e in range(8): A(f"v_exp_f32 v{b+e}, v{b+e}")
        for e in range(4): A(f"v_pk_fma_f32 {vr(b+2*e,2)}, {vr(b+2*e,2)}, {vr(g+2,2)}, {vr(g+2,2)} op_sel:[0,1,1] op_sel_hi:[1,1,1]")
        for e in range(8): A(f"v_rcp_f32 v{b+e}, v{b+e}")
        for e in range(4): A(f"v_pk_mul_f32 {vr(b+2*e,2)}, {vr(b+2*e,2)}, {vr(b+8+2*e,2)}")
        for e in range(4): A(f"v_cvt_pk_bf16_f32 v{o+e}, v{b+2*e}, v{b+2*e+1}")
        so,off=("s29",0) if a==6 else (("s27","s28")[x],1024*(w-2))
        A(f"buffer_store_dwordx4 {vr(o,4)}, v3, {WS}, {so} offen offset:{off} sc1")
    if STAMP:
        T(4); A("s_waitcnt vmcnt(0)"); T(5)
        A("s_cmp_lg_u32 s3, 0\ns_cbranch_scc1 Lk3_end"); T.flush(WS,0,6,2)
    A("s_endpgm")
    A.label("Lk3_retry")
    A("s_add_u32 s30, s30, 1\ns_cmp_gt_u32 s30, 0x20000\ns_cbranch_scc1 Lk3_ok")
    for i in range(4): A(f"buffer_load_dwordx4 {vr(GA+4*i,4)}, v3, {WS}, s24 offen offset:{1024*i} sc1")
    A("s_waitcnt vmcnt(0)\ns_branch Lk3_chk")
    A.label("Lk3_end")
    A("s_endpgm")
    return A, dict(name="glu_kernel", grid=256, block=256, lds=LDS, vgpr=212, accum=None)
def gen_k4():
    A=Asm(); T=Stamps(A,3)
    L_RED=0; L_X=49152; L_GB=L_X+8192; LDS=90112
    A("s_cmp_ge_u32 s2, 256\ns_cbranch_scc1 Lk4_end")
    T(0)
    WS=srd(A,"ws",8); OUTB=srd(A,"out",12)
    A("v_lshrrev_b32 v1, 6, v0\nv_readfirstlane_b32 s3, v1\nv_and_b32 v2, 63, v0")
    A("s_lshr_b32 s6, s2, 3\ns_bfe_u32 s4, s2, 0x20001\ns_lshl_b32 s4, s4, 3\ns_and_b32 s7, s6, 7\ns_add_u32 s4, s4, s7")
    A("s_and_b32 s5, s2, 1\ns_lshl_b32 s5, s5, 2\ns_lshr_b32 s7, s6, 3\ns_add_u32 s5, s5, s7")
    A("s_lshl_b32 s4, s4, 1\ns_lshr_b32 s7, s3, 1\ns_add_u32 s4, s4, s7\ns_lshl_b32 s5, s5, 1\ns_and_b32 s7, s3, 1\ns_add_u32 s5, s5, s7")
    A(f"s_mul_i32 s7, s3, 28672\ns_add_u32 s20, s7, {WS_H}\ns_add_u32 s21, s7, {WS_WD}")
    A("s_mul_i32 s16, s4, 114688\ns_xor_b32 s7, s4, 1\ns_mul_i32 s17, s7, 114688\ns_mul_i32 s18, s5, 114688\ns_xor_b32 s7, s5, 1\ns_mul_i32 s19, s7, 114688")
    A("s_add_u32 s16, s16, s20\ns_add_u32 s17, s17, s20\ns_add_u32 s18, s18, s21\ns_add_u32 s19, s19, s21")
    A("v_lshlrev_b32 v3, 4, v2")
    A("v_lshrrev_b32 v4, 2, v2\nv_lshlrev_b32 v4, 8, v4\nv_and_b32 v7, 3, v2\nv_lshl_add_u32 v4, v7, 4, v4")
    A(f"s_lshr_b32 s22, s4, 2\ns_lshl_b32 s22, s22, 17\ns_and_b32 s7, s4, 3\ns_lshl_b32 s7, s7, 6\ns_add_u32 s22, s22, s7\ns_lshl_b32 s7, s5, 13\ns_add_u32 s22, s22, s7\ns_add_u32 s22, s22, {WS_X2}\ns_add_u32 s23, s22, 4096")
    A(f"s_lshl_b32 s24, s3, 11\ns_add_u32 s24, s24, {L_X}\ns_mov_b32 m0, s24")
    A(f"v_and_b32 v5, 31, v2\nv_lshlrev_b32 v6, 2, v5\ns_lshl_b32 s25, s5, 7\ns_add_u32 s25, s25, {WS_MODP+5*2048}")
    A("s_add_u32 s26, s25, 12288\ns_add_u32 s27, s25, 24576\ns_add_u32 s28, s25, 36864")
    vm=Cnt(A,"vmcnt",63)
    WIN=13; FB=32
    def fr(ks,i): return FB+16*(ks%WIN)+4*i
    tk={}
    def loads(ks):
        L=[]
        for i,s in ((0,16),(1,18),(2,19),(3,17)):
            L.append((ks,i,f"buffer_load_dwordx4 {vr(fr(ks,i),4)}, v3, {WS}, s{s} offen offset:{1024*(ks&3)}"+(f"\ns_add_u32 s{s}, s{s}, 4096" if (ks&3)==3 else "")))
        return L
    A("s_waitcnt lgkmcnt(0)")
    for ks in range(WIN):
        for k,i,t in loads(ks): tk[(k,i)]=vm.issue(t)
        if ks==3:
            for i,s in enumerate((25,26,27,28)): tg=vm.issue(f"buffer_load_dword v{8+i}, v6, {WS}, s{s} offen")
            vm.issue(f"buffer_load_dwordx4 v4, {WS}, s22 offen lds")
            A("s_add_u32 m0, m0, 1024\ns_nop 0")
            tx=vm.issue(f"buffer_load_dwordx4 v4, {WS}, s23 offen lds")
    T(1)
    A("v_lshrrev_b32 v12, 5, v2\nv_bfe_u32 v13, v2, 2, 2\nv_lshl_add_u32 v13, v12, 3, v13\nv_lshlrev_b32 v13, 6, v13\nv_bfe_u32 v14, v2, 4, 1\nv_lshl_add_u32 v13, v14, 5, v13\nv_lshl_add_u32 v13, v7, 3, v13\nv_add_u32 v13, s24, v13")
    A(f"s_lshl_b32 s7, s3, 7\ns_add_u32 s7, s7, {L_GB}\nv_add_u32 v14, s7, v6\nv_lshl_add_u32 v15, v12, 5, s7")
    for qq in (1,2,3): A(f"s_xor_b32 s7, s3, {qq}\ns_mul_i32 s7, s7, 12288\ns_add_u32 s7, s7, {4096*(qq-1)}\nv_add_u32 v{15+qq}, s7, v3")
    A("s_mul_i32 s7, s3, 12288\nv_add_u32 v19, s7, v3")
    A("v_lshlrev_b32 v20, 10, v5\nv_lshl_add_u32 v20, v12, 4, v20\ns_lshl_b32 s29, s4, 15\ns_lshl_b32 s7, s5, 6\ns_add_u32 s29, s29, s7")
    MM=[(0,1,0),(1,2,0),(3,2,3),(2,1,3)]
    for ks in range(28):
        lq = loads(ks+WIN-1) if (ks>=1 and ks+WIN-1<28) else []
        for a,w,h in MM:
            vm.wait(max(tk[(ks,w)],tk[(ks,h)]))
            if ks==0 and a==0: T(2)
            A(f"v_mfma_f32_32x32x16_bf16 {ar(16*a,16)}, {vr(fr(ks,w),4)}, {vr(fr(ks,h),4)}, {ar(16*a,16) if ks else 0}")
            if lq:
                k,i,t=lq.pop(0); tk[(k,i)]=vm.issue(t)
        if ks==6:
            assert vm.done>tx
            A("v_add_f32 v8, v8, v9\nv_add_f32 v10, v10, v11\nv_add_f32 v8, v8, v10"); round_bf16(A,8,8); A("ds_write_b32 v14, v8")
            for j in range(4): A(f"ds_read_b64_tr_b16 {vr(240+2*j,2)}, v13 offset:{1024*(j>>1)+256*(j&1)}")
    A("s_waitcnt lgkmcnt(0)")
    T(3)
    for qq in (1,3,2):
        for i in range(4): A(f"ds_write_b128 v{15+qq}, {ar(16*qq+4*i,4)} offset:{1024*i}")
    for j in range(4): A(f"ds_read_b128 {vr(32+4*j,4)}, v15 offset:{64*(j>>1)+16*(j&1)}")
    for e in range(16): A(f"v_accvgpr_read_b32 v{48+e}, a{e}")
    for e in range(8): A(f"v_lshlrev_b32 v{64+2*e}, 16, v{240+e}\nv_and_b32 v{65+2*e}, 0xffff0000, v{240+e}")
    A("s_waitcnt lgkmcnt(0)\ns_barrier")
    T(4)
    for i in range(4):
        for s in range(3): A(f"ds_read_b128 {vr(80+16*s+4*i,4)}, v19 offset:{4096*s+1024*i}")
    for i in range(4):
        A(f"s_waitcnt lgkmcnt({9-3*i})")
        for e in (0,2):
            r=4*i+e
            A(f"v_pk_add_f32 {vr(48+r,2)}, {vr(48+r,2)}, {vr(80+r,2)}\nv_pk_add_f32 {vr(96+r,2)}, {vr(96+r,2)}, {vr(112+r,2)}")
        for e in (0,2):
            r=4*i+e; A(f"v_pk_add_f32 {vr(48+r,2)}, {vr(48+r,2)}, {vr(96+r,2)}")
        for e in (0,2):
            r=4*i+e; A(f"v_pk_fma_f32 {vr(48+r,2)}, {vr(48+r,2)}, {vr(32+r,2)}, {vr(64+r,2)}")
        for e in (0,2):
            r=4*i+e; A(f"v_cvt_pk_bf16_f32 v{128+r//2}, v{48+r}, v{49+r}")
        if i&1: A(f"buffer_store_dwordx4 {vr(128+4*(i>>1),4)}, v20, {OUTB}, s29 offen offset:{32*(i>>1)}")
    if STAMP:
        T(5); A("s_waitcnt vmcnt(0)"); T(6)
        A("s_cmp_lg_u32 s3, 0\ns_cbranch_scc1 Lk4_end"); T.flush(WS,0,7,2)
    A.label("Lk4_end")
    A("s_endpgm")
    return A, dict(name="down_kernel", grid=256, block=256, lds=LDS, vgpr=256+64, accum=256)
```

```python
import sys
from asmlib import *
STAMP = "--stamp" in sys.argv
OUT = [a for a in sys.argv[1:] if not a.startswith("--")]
OUT = OUT[0] if OUT else "k1.s"
WS_MODP=0x0; WS_STAT=0x10000; WS_EX=0x20000; WS_STAMP=0x40000
WS_XT=0x100000; XTROW=32768+256
WS_PST=0x80000
WS_KX=0x320000; KXROW=4096+128
WS_X2=0x540000
WS_WP=0x740000
WS_WD=0xAC0000
WS_H =0xC80000
WS_END=0x1380000
dloc=lambda j,h,r: 16*(j>>1)+8*h+4*(j&1)+r
KA=dict(u=0,loga=8,aim=16,cre=24,cim=32,logdt=40,dskip=48,wg=64,wu=72,wd=80,c=88,wmod=96,out=104,dbg=112,ws=120)
SZ=dict(u=2097152,loga=131072,aim=131072,cre=131072,cim=131072,logdt=1024,dskip=1024,wg=1835008,wu=1835008,wd=1835008,c=1024,wmod=3145728,out=2097152,ws=WS_END)
LOG2E="0x3fb8aa3b"; INV2PI="0x3e22f983"
def srd(A,name,b):
    A(f"s_load_dwordx2 {sr(b,2)}, s[0:1], {KA[name]}")
    A(f"s_mov_b32 s{b+2}, {SZ[name]}\ns_mov_b32 s{b+3}, 0x20000")
    return sr(b,4)
def prefetch_code(A, start, end, vtmp, vdst, sb):
    A(f"s_getpc_b64 {sr(sb,2)}")
    lab=f"Lpc_{start}_{len(A.L)}"
    A.label(lab)
    A(f"s_sub_u32 s{sb}, s{sb}, {lab}-{start}\ns_subb_u32 s{sb+1}, s{sb+1}, 0")
    A(f"s_mov_b32 s{sb+2}, {end}-{start}\ns_mov_b32 s{sb+3}, 0x20000")
    A(f"v_lshlrev_b32 v{vtmp}, 6, v0")
    A(f"buffer_load_dword v{vdst}, v{vtmp}, {sr(sb,4)}, 0 offen")
def round_bf16(A, d, s):
    A(f"v_cvt_pk_bf16_f32 v{d}, v{s}, v{s}\nv_lshlrev_b32 v{d}, 16, v{d}")
class Stamps:
    def __init__(self,A,kid): self.A=A; self.kid=kid
    def __call__(self,i):
        if STAMP: self.A(f"s_memrealtime s[{80+2*i}:{81+2*i}]")
    def flush(self, WS, role, n, vt):
        if not STAMP: return
        A=self.A
        A("s_waitcnt lgkmcnt(0)\ns_mov_b64 exec, 1")
        A(f"s_lshl_b32 s79, s2, 5\ns_add_u32 s79, s79, {WS_STAMP+(self.kid*2+role)*8192}\nv_mov_b32 v{vt}, 0")
        for i in range(n):
            A(f"v_mov_b32 v{vt+1}, s{80+2*i}\nbuffer_store_dword v{vt+1}, v{vt}, {WS}, s79 offen offset:{4*i}")
def cmul(A,z,a,b):
    A(f"v_pk_mul_f32 {vr(z,2)}, {vr(a,2)}, {vr(b,2)} op_sel:[0,0] op_sel_hi:[0,1]")
    return lambda: A(f"v_pk_fma_f32 {vr(z,2)}, {vr(a,2)}, {vr(b,2)}, {vr(z,2)} op_sel:[1,1,0] op_sel_hi:[1,0,1] neg_lo:[1,0,0]")

def gen_k1():
    A=Asm(); T=Stamps(A,0)
    L_OP=0; OPW=64*272; L_TAB=4*OPW; L_XS=L_TAB+12288; L_MP=L_XS+8704; L_ST=L_MP+1024; LDS=L_ST+64
    A("s_cmp_ge_u32 s2, 256\ns_cbranch_scc1 Lk1_end")
    T(0)
    WS=srd(A,"ws",8)
    A("v_lshrrev_b32 v1, 6, v0\nv_readfirstlane_b32 s3, v1")
    A("s_cmp_ge_u32 s3, 4\ns_cbranch_scc1 Lk1_misc")
    LA=srd(A,"loga",12); AI=srd(A,"aim",16); CR=srd(A,"cre",20); CI=srd(A,"cim",24); LD=srd(A,"logdt",28)
    A("v_lshlrev_b32 v1, 1, v0\ns_lshl_b32 s4, s2, 9\ns_lshl_b32 s5, s2, 2\nv_lshrrev_b32 v7, 7, v0\nv_lshlrev_b32 v7, 1, v7")
    A("s_waitcnt lgkmcnt(0)")
    A(f"buffer_load_ushort v6, v7, {LD}, s5 offen")
    A(f"buffer_load_ushort v2, v1, {LA}, s4 offen\nbuffer_load_ushort v3, v1, {AI}, s4 offen")
    A(f"buffer_load_ushort v4, v1, {CR}, s4 offen\nbuffer_load_ushort v5, v1, {CI}, s4 offen")
    T(1)
    A("v_and_b32 v8, 63, v0")
    A(f"s_mul_i32 s6, s3, {OPW}")
    A("v_lshl_add_u32 v9, v8, 2, s6")
    A("v_and_b32 v10, 15, v0\nv_bfe_u32 v11, v0, 4, 2")
    A("v_mul_u32_u24 v12, 272, v10\nv_lshl_add_u32 v12, v11, 4, v12\nv_add_u32 v12, s6, v12")
    A(f"s_mul_i32 s7, s3, 3072\ns_add_u32 s7, s7, {L_TAB}")
    A("v_lshlrev_b32 v13, 6, v10\nv_lshl_add_u32 v13, v11, 4, v13\nv_add_u32 v13, s7, v13")
    A("v_lshlrev_b32 v14, 5, v10\nv_lshl_add_u32 v14, v11, 4, v14")
    A("v_lshlrev_b32 v15, 4, v10\nv_lshl_add_u32 v15, v11, 8, v15")
    A("v_cmp_gt_u32 vcc, 2, v11\nv_cndmask_b32 v14, v15, v14, vcc\nv_add_u32 v14, s7, v14")
    A("v_lshlrev_b32 v15, 3, v10\nv_lshl_add_u32 v15, v11, 8, v15\nv_add_u32 v15, s7, v15\nv_add_u32 v15, 2048, v15")
    A(f"s_lshr_b32 s7, s3, 1\ns_mul_i32 s7, s7, 6144\ns_add_u32 s7, s7, {L_TAB}")
    A("v_and_b32 v25, 127, v0\nv_lshlrev_b32 v26, 3, v25")
    for e in range(0,8,2):
        A(f"v_add_u32 v27, {e}, v26\nv_add_u32 v28, {e+1}, v26\nv_cvt_f32_u32 v29, v27\nv_cvt_f32_u32 v30, v28\nv_cvt_pk_bf16_f32 v29, v29, v30")
        A(f"v_min_u32 v27, 127, v27\nv_min_u32 v28, 127, v28\nv_lshrrev_b32 v30, 16, v29\nv_and_b32 v29, 0xffff, v29")
        A(f"v_subrev_u32 v29, 17024, v29\nv_subrev_u32 v30, 17024, v30\nv_max_i32 v27, v27, v29\nv_max_i32 v28, v28, v30")
        A(f"v_lshl_add_u32 v{16+e}, v27, 2, s7\nv_lshl_add_u32 v{17+e}, v28, 2, s7")
    A("v_lshl_add_u32 v24, v25, 2, s7\nv_add_u32 v24, 2048, v24\nv_add_u32 v31, 4, v24")
    A(f"v_lshrrev_b32 v26, 7, v0\nv_mul_u32_u24 v26, {KXROW}, v26\nv_and_b32 v39, 31, v0\nv_lshl_add_u32 v39, v39, 2, v26\nv_lshl_add_u32 v26, v25, 4, v26")
    A(f"s_mul_i32 s32, s2, {2*KXROW}\ns_add_u32 s33, s32, {WS_KX}\ns_add_u32 s32, s33, 128")
    A(f"v_mov_b32 v27, 0\nbuffer_store_dword v27, v39, {WS}, s33 offen sc1")
    A("v_and_b32 v25, 1, v0\nv_cmp_eq_u32 s[34:35], 1, v25")
    A(f"s_mov_b32 s36, {LOG2E}\ns_mov_b32 s37, {INV2PI}")
    A("v_mov_b32 v27, 0x3f80\nds_write_b32 v9, v27")
    A("s_waitcnt vmcnt(4)")
    T(2)
    A("v_lshlrev_b32 v6, 16, v6\nv_lshlrev_b32 v2, 16, v2\nv_mul_f32 v6, s36, v6\nv_mul_f32 v2, s36, v2\nv_exp_f32 v6, v6\nv_exp_f32 v2, v2")
    A("s_waitcnt vmcnt(1)")
    A("v_lshlrev_b32 v3, 16, v3\nv_lshlrev_b32 v4, 16, v4\nv_lshlrev_b32 v5, 16, v5")
    A("v_cvt_pk_bf16_f32 v2, v2, v6\nv_and_b32 v6, 0xffff0000, v2\nv_lshlrev_b32 v2, 16, v2")
    A("v_mul_f32 v2, v2, v6\nv_mul_f32 v3, v3, v6\nv_add_f32 v6, v6, v6")
    A("v_mul_f32 v2, s36, v2\nv_mul_f32 v3, s37, v3")
    R={}; nxt=[40]
    def new(n):
        R[n]=nxt[0]; nxt[0]+=2; return R[n]
    g0=new("g0"); A(f"v_mul_f32 v{g0}, v4, v6\nv_mul_f32 v{g0+1}, v5, v6")
    for k,(p,lit) in enumerate(((1,"1.0"),(16,"0x41800000"),(256,"0x43800000"))):
        new(f"w{p}"); A(f"v_mul_f32 v{32+2*k}, {lit}, v2\nv_mul_f32 v{33+2*k}, {lit}, v3")
    for k in range(3): A(f"v_exp_f32_e64 v{32+2*k}, -v{32+2*k}\nv_fract_f32 v{33+2*k}, v{33+2*k}")
    for k,p in enumerate((1,16,256)): A(f"v_cos_f32 v{R[f'w{p}']}, v{33+2*k}\nv_sin_f32 v{R[f'w{p}']+1}, v{33+2*k}")
    for k,p in enumerate((1,16,256)): A(f"v_pk_mul_f32 {vr(R[f'w{p}'],2)}, {vr(R[f'w{p}'],2)}, {vr(32+2*k,2)} op_sel_hi:[1,0]")
    row={f"w{i}":i for i in range(1,16)}
    for i in range(8): row[f"w{256+2*i}"]=16+i
    for r in range(4): row[f"w{512+4*r}"]=24+r; row[f"w{768+4*r}"]=28+r
    for t in range(4):
        for b in range(2): row[f"w{1024+256*t+8*b}"]=32+2*t+b
    row["w2048"]=40
    for j in range(16): row[f"g{j}"]=48+j
    pend=[]; tog=[0]
    def emit_store(n):
        if n in row:
            t=28+(tog[0]&3) if (tog[0]&3)<3 else 38; tog[0]+=1
            neg="-" if n[0]=="g" else ""
            A(f"v_cvt_pk_bf16_f32 v{t}, v{R[n]}, {neg}v{R[n]+1}\nds_write_b32 v9, v{t} offset:{row[n]*272}")
    levels=[
     [("w2","w1","w1"),("w32","w16","w16"),("w512","w256","w256"),("g1","g0","w16")],
     [("w3","w2","w1"),("w4","w2","w2"),("w64","w32","w32"),("w768","w512","w256"),("w1024","w512","w512"),("g2","g0","w32"),("g3","g1","w32"),("w258","w256","w2")],
     [(f"w{4+i}","w4",f"w{i}") for i in range(1,5)]+[("w128","w64","w64")]+[(f"g{4+i}",f"g{i}","w64") for i in range(4)]+
       [("w1280","w1024","w256"),("w1536","w1024","w512"),("w1792","w1024","w768"),("w2048","w1024","w1024"),("w260","w256","w4"),("w516","w512","w4"),("w772","w768","w4")],
     [(f"w{8+i}","w8",f"w{i}") for i in range(1,8)]+[(f"g{8+i}",f"g{i}","w128") for i in range(8)]+
       [("w262","w256","w6"),("w264","w256","w8"),("w520","w512","w8"),("w776","w768","w8")]+[(f"w{1032+256*t}",f"w{1024+256*t}","w8") for t in range(4)],
     [("w266","w256","w10"),("w268","w256","w12"),("w270","w256","w14"),("w524","w512","w12"),("w780","w768","w12")],
    ]
    pend=["g0","w1","w256"]
    for lv in levels:
        for i in range(0,len(lv),2):
            fs=[cmul(A,new(z),R[a],R[b]) for z,a,b in lv[i:i+2]]
            if pend: emit_store(pend.pop(0))
            for f in fs: f()
            if pend: emit_store(pend.pop(0))
            pend+=[z for z,_,_ in lv[i:i+2] if z in row]
    while pend: emit_store(pend.pop(0))
    base=(nxt[0]+3)//4*4
    A("s_waitcnt lgkmcnt(0)")
    T(3)
    lg=Cnt(A,"lgkmcnt",15)
    fr={}; tk={}
    for s in range(4):
        for Tt in (3,0,1,2):
            r=40+(s*4+Tt)*4; fr[(s,Tt)]=r
            tk[(s,Tt)]=lg.issue(f"ds_read_b128 {vr(r,4)}, v12 offset:{Tt*4352+s*64}")
    acc=104
    for s in range(4):
        for Tt in range(3):
            lg.wait(tk[(s,Tt)])
            c = "0" if s==0 else vr(acc+4*Tt,4)
            A(f"v_mfma_f32_16x16x32_bf16 {vr(acc+4*Tt,4)}, {vr(fr[(s,Tt)],4)}, {vr(fr[(s,3)],4)}, {c}")
    A(f"ds_write_b128 v13, {vr(acc,4)}\nds_write_b128 v14, {vr(acc+4,4)} offset:1024")
    A(f"ds_write2_b64 v15, {vr(acc+8,2)}, {vr(acc+10,2)} offset0:0 offset1:16")
    A("s_waitcnt lgkmcnt(0)\ns_barrier")
    T(4)
    A("ds_read2st64_b32 v[56:57], v24 offset0:0 offset1:12\nds_read2st64_b32 v[58:59], v31 offset0:0 offset1:12")
    for e in range(8): A(f"ds_read2st64_b32 {vr(40+2*e,2)}, v{16+e} offset0:0 offset1:12")
    A("s_waitcnt lgkmcnt(8)")
    A("v_add_f32 v56, v56, v57\nv_add_f32 v58, v58, v59\nv_cndmask_b32 v57, v56, v58, s[34:35]")
    A("v_cvt_pk_bf16_f32 v64, v56, v56\nv_cvt_pk_bf16_f32 v65, v56, v56\nv_cvt_pk_bf16_f32 v66, v57, v58\nv_cvt_pk_bf16_f32 v67, v58, v58")
    A(f"buffer_store_dwordx4 v[64:67], v26, {WS}, s32 offen offset:2048 sc1")
    A("s_waitcnt lgkmcnt(0)")
    for e in range(8): A(f"v_add_f32 v{40+2*e}, v{40+2*e}, v{41+2*e}")
    for e in range(4): A(f"v_cvt_pk_bf16_f32 v{60+e}, v{40+4*e}, v{42+4*e}")
    A(f"buffer_store_dwordx4 v[60:63], v26, {WS}, s32 offen sc1")
    if STAMP:
        T(5); A("s_waitcnt vmcnt(0)"); T(6)
        A("s_cmp_lg_u32 s3, 0\ns_cbranch_scc1 Lk1_end"); T.flush(WS,0,7,2)
    A("s_endpgm")
    A.label("Lk1_misc")
    U=srd(A,"u",12); WM=srd(A,"wmod",16); C=srd(A,"c",20)
    A("s_sub_u32 s3, s3, 4")
    A("v_and_b32 v0, 255, v0")
    prefetch_code(A,"Ltext_start","Ltext_end",1,70,24)
    A(f"v_add_u32 v1, 0x4000, v1\nbuffer_load_dword v71, v1, s[24:27], 0 offen")
    A("v_and_b32 v8, 63, v0\nv_lshlrev_b32 v1, 4, v8")
    A("s_lshl_b32 s4, s2, 13\ns_lshl_b32 s5, s3, 11\ns_add_u32 s4, s4, s5")
    A("s_and_b32 s6, s2, 3\ns_lshr_b32 s7, s2, 2")
    A("s_lshl_b32 s28, s6, 7\ns_lshl_b32 s29, s3, 5\ns_add_u32 s28, s28, s29")
    A("s_mul_i32 s29, s28, 6144\ns_lshl_b32 s30, s7, 7\ns_add_u32 s29, s29, s30\ns_lshl_b32 s28, s28, 1")
    A("s_cmp_ge_u32 s2, 192\ns_cselect_b32 s29, 0x400000, s29")
    A("s_add_u32 s30, s29, 49152\ns_add_u32 s31, s29, 98304\ns_add_u32 s33, s29, 147456")
    A("v_lshrrev_b32 v2, 3, v8\nv_and_b32 v3, 7, v8\nv_mul_u32_u24 v4, 6144, v2\nv_lshl_add_u32 v4, v3, 4, v4\nv_lshlrev_b32 v5, 1, v2")
    A("s_waitcnt lgkmcnt(0)")
    A(f"buffer_load_dwordx4 v[12:15], v1, {U}, s4 offen\nbuffer_load_dwordx4 v[16:19], v1, {U}, s4 offen offset:1024")
    for i in range(4): A(f"buffer_load_ushort v{20+i}, v5, {C}, s28 offen offset:{16*i}")
    for i,s in enumerate((29,30,31,33)): A(f"buffer_load_dwordx4 {vr(24+4*i,4)}, v4, {WM}, s{s} offen")
    T(1)
    A(f"s_mul_i32 s5, s3, 2176\ns_add_u32 s5, s5, {L_XS}\nv_add_u32 v9, s5, v1")
    A("v_bfe_u32 v6, v8, 2, 2\nv_mul_u32_u24 v6, 1088, v6\nv_lshrrev_b32 v7, 4, v8\nv_lshl_add_u32 v6, v7, 5, v6\nv_and_b32 v7, 3, v8\nv_lshl_add_u32 v6, v7, 3, v6")
    A(f"s_lshl_b32 s5, s3, 8\ns_add_u32 s34, s5, {L_XS}\nv_add_u32 v10, s34, v6")
    A(f"v_mul_u32_u24 v11, {XTROW}, v2\nv_lshl_add_u32 v11, v3, 4, v11")
    A(f"s_mul_i32 s34, s3, {16*XTROW}\ns_lshl_b32 s35, s2, 7\ns_add_u32 s34, s34, s35\ns_add_u32 s34, s34, {WS_XT}\ns_add_u32 s35, s34, {8*XTROW}")
    A(f"v_lshlrev_b32 v6, 5, v3\nv_lshrrev_b32 v7, 4, v8\nv_lshl_add_u32 v6, v7, 3, v6\ns_add_u32 s5, s5, {L_MP}\nv_add_u32 v56, s5, v6")
    A(f"v_lshrrev_b32 v7, 5, v8\ns_lshl_b32 s5, s3, 3\ns_add_u32 s5, s5, {L_ST}\nv_lshl_add_u32 v57, v7, 2, s5")
    A(f"s_mov_b32 s36, {LOG2E}\ns_mov_b32 s37, 0x3f803f80\ns_mov_b32 s38, 0x3b000000\ns_mov_b32 s39, 0x3727c5ac")
    A("s_waitcnt vmcnt(8)")
    T(2)
    A("ds_write_b128 v9, v[12:15]\nds_write_b128 v9, v[16:19] offset:1088")
    for e in range(4):
        c0 = "0" if e==0 else None
        for dst,src in ((40,12),(41,16)):
            A(f"v_dot2_f32_bf16 v{dst}, v{src+e}, s37, {c0 or f'v{dst}'}")
        for dst,src in ((42,12),(43,16)):
            A(f"v_dot2_f32_bf16 v{dst}, v{src+e}, v{src+e}, {c0 or f'v{dst}'}")
    A("s_waitcnt vmcnt(4)")
    for i in range(4): A(f"v_lshlrev_b32 v{20+i}, 16, v{20+i}")
    A("v_permlane32_swap_b32 v40, v41\nv_permlane32_swap_b32 v42, v43")
    for i in range(4): A(f"v_mul_f32 v{44+i}, s36, v{20+i}")
    A("v_add_f32 v40, v40, v41\nv_add_f32 v42, v42, v43\nv_mov_b32 v41, v40\nv_mov_b32 v43, v42")
    for i in range(4): A(f"v_exp_f32_e64 v{44+i}, -v{44+i}")
    A("v_permlane16_swap_b32 v40, v41\nv_permlane16_swap_b32 v42, v43")
    for i in range(4): A(f"v_add_f32 v{44+i}, 1.0, v{44+i}")
    A("v_add_f32 v40, v40, v41\nv_add_f32 v42, v42, v43")
    for i,ro in enumerate((8,4,2,1)):
        A(f"v_rcp_f32 v{44+i}, v{44+i}")
        A(f"v_add_f32_dpp v40, v40, v40 row_ror:{ro} row_mask:0xf bank_mask:0xf\nv_add_f32_dpp v42, v42, v42 row_ror:{ro} row_mask:0xf bank_mask:0xf")
    for i in range(4): A(f"v_mul_f32 v{20+i}, v{20+i}, v{44+i}")
    A("v_mul_f32 v40, s38, v40\nv_mul_f32 v42, s38, v42\nv_fma_f32 v42, -v40, v40, v42\nv_max_f32 v42, 0, v42")
    A("v_cvt_pk_bf16_f32 v20, v20, v21\nv_cvt_pk_bf16_f32 v22, v22, v23")
    A("v_cvt_pk_bf16_f32 v42, v42, v40\nv_and_b32 v40, 0xffff0000, v42\nv_lshlrev_b32 v42, 16, v42\nv_add_f32 v42, s39, v42")
    A("v_and_b32 v21, 0xffff0000, v20\nv_lshlrev_b32 v20, 16, v20\nv_and_b32 v23, 0xffff0000, v22\nv_lshlrev_b32 v22, 16, v22")
    round_bf16(A,42,42); A("v_sqrt_f32 v42, v42"); round_bf16(A,42,42); A("v_rcp_f32 v42, v42\nv_mul_f32_e64 v40, -v40, v42")
    A("ds_write2_b32 v57, v42, v40 offset0:0 offset1:8")
    for i in range(4):
        A(f"s_waitcnt vmcnt({3-i})")
        for e in range(4):
            A(f"v_lshlrev_b32 v{58+2*(e&1)}, 16, v{24+4*i+e}\nv_and_b32 v{59+2*(e&1)}, 0xffff0000, v{24+4*i+e}")
            sel = "op_sel:[0,1] op_sel_hi:[1,1]" if i&1 else "op_sel:[0,0] op_sel_hi:[1,0]"
            if i==0: A(f"v_pk_mul_f32 {vr(48+2*e,2)}, {vr(58+2*(e&1),2)}, v[20:21] {sel}")
            else:
                sel = "op_sel:[0,1,0] op_sel_hi:[1,1,1]" if i&1 else "op_sel:[0,0,0] op_sel_hi:[1,0,1]"
                A(f"v_pk_fma_f32 {vr(48+2*e,2)}, {vr(58+2*(e&1),2)}, {vr(20+(i&2),2)}, {vr(48+2*e,2)} {sel}")
    T(3)
    for e in range(4): A(f"v_permlane32_swap_b32 v{48+e}, v{52+e}")
    A("v_pk_add_f32 v[48:49], v[48:49], v[52:53]\nv_pk_add_f32 v[50:51], v[50:51], v[54:55]")
    A("v_permlane16_swap_b32 v48, v50\nv_permlane16_swap_b32 v49, v51\nv_pk_add_f32 v[48:49], v[48:49], v[50:51]")
    A("v_add_f32_dpp v48, v48, v48 row_ror:8 row_mask:0xf bank_mask:0xf\nv_add_f32_dpp v49, v49, v49 row_ror:8 row_mask:0xf bank_mask:0xf")
    A("ds_write_b64 v56, v[48:49]")
    A("s_waitcnt lgkmcnt(0)\ns_barrier")
    T(4)
    for j in range(2):
        for hf in range(2): A(f"ds_read_b64_tr_b16 {vr(12+4*j+2*hf,2)}, v10 offset:{hf*4352+j*128}")
    A(f"v_lshlrev_b32 v1, 2, v8\nv_add_u32 v2, {L_MP}, v1")
    A("ds_read2st64_b32 v[20:21], v2 offset0:0 offset1:1\nds_read2st64_b32 v[22:23], v2 offset0:2 offset1:3\nds_read_b32 v24, v2 offset:1024")
    A("s_waitcnt lgkmcnt(5)")
    A(f"buffer_store_dwordx4 v[12:15], v11, {WS}, s34 offen sc1")
    A("s_waitcnt lgkmcnt(3)")
    A(f"buffer_store_dwordx4 v[16:19], v11, {WS}, s35 offen sc1")
    A("s_waitcnt lgkmcnt(0)")
    A("s_cmp_eq_u32 s3, 1\ns_cbranch_scc1 Lk1_st")
    A("s_cmp_lg_u32 s3, 0\ns_cbranch_scc1 Lk1_end")
    A("s_cmp_ge_u32 s2, 192\ns_cbranch_scc1 Lk1_m_done")
    A("v_add_f32 v20, v20, v21\nv_add_f32 v22, v22, v23\nv_add_f32 v20, v20, v22")
    A(f"s_mul_i32 s6, s6, 12288\ns_lshl_b32 s7, s7, 8\ns_add_u32 s6, s6, s7")
    A(f"buffer_store_dword v20, v1, {WS}, s6 offen sc1")
    A.label("Lk1_m_done")
    if STAMP:
        T(5); A("s_waitcnt vmcnt(0)"); T(6); T.flush(WS,1,7,2)
    A("s_endpgm")
    A.label("Lk1_st")
    A(f"s_mov_b64 exec, 0xffff\ns_lshl_b32 s6, s2, 6\ns_add_u32 s6, s6, {WS_STAT}")
    A(f"buffer_store_dword v24, v1, {WS}, s6 offen sc1")
    A.label("Lk1_end")
    A("s_endpgm")
    return A, dict(name="prep_kernel", grid=256, block=512, lds=LDS, vgpr=max(base,120), accum=None)

kernels=[gen_k1]
try:
    import gen1b
    kernels+=gen1b.kernels(globals())
except ImportError: pass
def build():
    hdr=[l for l in open("adaLN_cond__ssm_conv_s4d__glu_gated_glu__prompt.s.ref").read().split("\n") if l.startswith(";") and "@launch" not in l and "Override" not in l and "grid=ceil" not in l]
    ks=[g() for g in kernels]
    out=hdr[:]
    for A,m in ks: out.append(f"; @launch kernel={m['name']} grid=({m['grid']},1,1) block=({m['block']},1,1) lds={m['lds']}")
    out.append('.amdgcn_target "amdgcn-amd-amdhsa--gfx950"\n.text\n.p2align 8\nLtext_start:')
    for A,m in ks:
        n=pad_hazards_fast(A.L, verbose="--hz" in sys.argv)
        print(m['name'],"instr lines",len(A.L),"nop states",n,"lds",m['lds'],"vgpr",m['vgpr'])
        out.append(f".globl {m['name']}\n.p2align 8\n.type {m['name']},@function\n{m['name']}:\nL{m['name']}_begin:")
        out.append(A.text())
        out.append(f"L{m['name']}_fin:")
    out.append("Ltext_end:")
    out.append('.section .rodata,"a"\n.p2align 6')
    for A,m in ks: out.append(kernel_desc(m['name'],m['vgpr'],96,m['accum']))
    open(OUT,"w").write("\n".join(out)+"\n")
if __name__=="__main__": build()
```

```python
import sys
from asmlib import kernel_desc
base=open(sys.argv[1]).read()
EMPTY="""
.globl nop_kernel
.p2align 8
.type nop_kernel,@function
nop_kernel:
  s_endpgm
.globl rdbx_kernel
.p2align 8
.type rdbx_kernel,@function
rdbx_kernel:
  s_load_dwordx2 s[8:9], s[0:1], 56
  s_mov_b32 s10, 2097152
  s_mov_b32 s11, 0x20000
  s_lshl_b32 s3, s2, 13
  v_lshlrev_b32 v1, 4, v0
  s_waitcnt lgkmcnt(0)
  buffer_load_dwordx4 v[4:7], v1, s[8:11], s3 offen
  s_add_u32 s3, s3, 4096
  buffer_load_dwordx4 v[8:11], v1, s[8:11], s3 offen
  s_waitcnt vmcnt(0)
  s_endpgm
.globl rdk_kernel
.p2align 8
.type rdk_kernel,@function
rdk_kernel:
  s_load_dwordx2 s[8:9], s[0:1], 56
  s_waitcnt lgkmcnt(0)
  s_endpgm
"""
def var(pre,post,out):
    s=base.replace("Ltext_end:","Ltext_end:"+EMPTY)
    s+="\n".join(kernel_desc(n,16,32) for n in ("nop_kernel","rdbx_kernel","rdk_kernel"))+"\n"
    L=s.split("\n"); idx=[i for i,l in enumerate(L) if l.startswith("; @launch")]
    mk=lambda n:f"; @launch kernel={n}_kernel grid=(256,1,1) block=(256,1,1) lds=0"
    L=L[:idx[0]]+[mk(n) for n in pre]+L[idx[0]:idx[-1]+1]+[mk(n) for n in post]+L[idx[-1]+1:]
    open(out,"w").write("\n".join(L))
var([],[],"var_a.s")
var([],["nop"]*4,"var_b.s")
var([],["rdk"],"var_c.s")
var([],["rdbx"],"var_d.s")
var(["nop"],[],"var_e.s")
var([],["rdbx","rdbx"],"var_f.s")
```
